```python
import torch

def _softmax(x, axis=-1):
    return torch.softmax(x, dim=axis)
def _gelu(x):
    return torch.nn.functional.gelu(x, approximate="tanh")
def _silu(x):
    return torch.nn.functional.silu(x)
def _sigmoid(x):
    return torch.sigmoid(x)
def _layernorm(x, axis=-1, eps=1e-5):
    m = x.mean(dim=axis, keepdim=True)
    v = x.var(dim=axis, keepdim=True, unbiased=False)
    return (x - m) / torch.sqrt(v + eps)
def _scatter_add(tgt, idx, src, axis=0):
    return tgt.clone().index_add_(axis, idx, src)
def _segment_sum(src, seg, n):
    out = torch.zeros((n,) + src.shape[1:], dtype=src.dtype)
    return out.index_add_(0, seg, src)
def _pad(x, pw):
    flat = tuple(v for pair in reversed(pw) for v in pair)
    return torch.nn.functional.pad(x, flat)

kernel_name = 'gated_mix__ssm_conv_s5__dense_activation_squared_relu__prompt'

def setup_inputs():

    _w = (lambda a: (lambda t: t.to(torch.bfloat16) if t.is_floating_point() else t)(torch.as_tensor(a)))
    def _A_setup():
        B, S, D = 1, 2048, 512
        P = D
        Lambda_re = -0.5 * (lambda _x: torch.exp(torch.as_tensor(_x)))((lambda *s: torch.randn(*s, dtype=torch.bfloat16) * 0.4)(P))
        Lambda_im = (lambda *s: torch.randn(*s, dtype=torch.bfloat16) * 0.8)(P) * 1.0
        B_re = (lambda *s: torch.randn(*s, dtype=torch.bfloat16) * 0.8)(P, D) * (D ** -0.5)
        B_im = (lambda *s: torch.randn(*s, dtype=torch.bfloat16) * 0.8)(P, D) * (D ** -0.5)
        C_re = (lambda *s: torch.randn(*s, dtype=torch.bfloat16) * 0.8)(D, P) * (P ** -0.5)
        C_im = (lambda *s: torch.randn(*s, dtype=torch.bfloat16) * 0.8)(D, P) * (P ** -0.5)
        log_dt = (lambda *s: torch.randn(*s, dtype=torch.bfloat16) * 0.4)(P) * 0.3 - 2.0
        Dskip = (lambda *s: torch.randn(*s, dtype=torch.bfloat16) * 0.1)(D)
        return {
            "x": _w((lambda *s: torch.randn(*s, dtype=torch.bfloat16) * 0.05)(B, S, D)),
            "Lambda_re": _w(Lambda_re),
            "Lambda_im": _w(Lambda_im),
            "B_re": _w(B_re),
            "B_im": _w(B_im),
            "C_re": _w(C_re),
            "C_im": _w(C_im),
            "log_dt": _w(log_dt),
            "Dskip": _w(Dskip),
        }
    _A_in = _A_setup()

    def _B_setup():
        B, S, D, F = 1, 2048, 512, 1792
        return {
            "x": _w((lambda *s: torch.randn(*s, dtype=torch.bfloat16) * 0.05)(B, S, D)),
            "w1": _w((lambda *s: torch.randn(*s, dtype=torch.bfloat16) * 0.05)(D, F)),
            "b1": _w((lambda *s: torch.randn(*s, dtype=torch.bfloat16) * 0.05)(F)),
            "w2": _w((lambda *s: torch.randn(*s, dtype=torch.bfloat16) * 0.05)(F, D)),
            "b2": _w((lambda *s: torch.randn(*s, dtype=torch.bfloat16) * 0.05)(D)),
        }
    _B_in = _B_setup()

    return {
        "A_x": _A_in["x"],
        "A_Lambda_re": _A_in["Lambda_re"],
        "A_Lambda_im": _A_in["Lambda_im"],
        "A_B_re": _A_in["B_re"],
        "A_B_im": _A_in["B_im"],
        "A_C_re": _A_in["C_re"],
        "A_C_im": _A_in["C_im"],
        "A_log_dt": _A_in["log_dt"],
        "A_Dskip": _A_in["Dskip"],
        "B_x": _B_in["x"],
        "B_w1": _B_in["w1"],
        "B_b1": _B_in["b1"],
        "B_w2": _B_in["w2"],
        "B_b2": _B_in["b2"],
        "gate_w": _w((lambda *s: torch.randn(*s, dtype=torch.bfloat16) * 0.05)(512) * 16.0),
    }

def reference(A_x, A_Lambda_re, A_Lambda_im, A_B_re, A_B_im, A_C_re, A_C_im, A_log_dt, A_Dskip, B_x, B_w1, B_b1, B_w2, B_b2, gate_w):
    def _A_ref(x, Lambda_re, Lambda_im, B_re, B_im, C_re, C_im, log_dt, Dskip):
        Bsz, L, H = x.shape
        Lam = Lambda_re + 1j * Lambda_im
        Bmat = B_re + 1j * B_im
        Cmat = C_re + 1j * C_im
        dt = torch.exp(log_dt)
        Lam_bar = torch.exp(dt * Lam)
        B_bar = ((Lam_bar - 1.0) / Lam)[:, None] * Bmat
        Bu = torch.einsum("bld,pd->blp", x + 0j, B_bar)
        h = torch.zeros_like(Bu[:, 0, :])
        hs = []
        for t in range(L):
            h = Lam_bar[None, :] * h + Bu[:, t, :]
            hs.append(h)
        hseq = torch.stack(hs, 1)
        y = 2.0 * torch.einsum("blp,dp->bld", hseq, Cmat).real + x * Dskip[None, None, :]
        return y

    def _B_ref(x, w1, b1, w2, b2):
        h = torch.einsum("bsd,df->bsf", x, w1) + b1
        zero = torch.zeros_like(h)
        r = torch.where(h > zero, h, zero)
        h = r * r
        out = torch.einsum("bsf,fd->bsd", h, w2) + b2
        return out

    x = A_x
    g = _sigmoid((x * gate_w).sum(-1, keepdims=True))
    a = _A_ref(x, A_Lambda_re, A_Lambda_im, A_B_re, A_B_im, A_C_re, A_C_im, A_log_dt, A_Dskip)
    b = _B_ref(x, B_w1, B_b1, B_w2, B_b2)
    return g * a + (1 - g) * b
```

```python
import re


class Ins:
    __slots__ = ("text", "vm", "lg", "opt")

    def __init__(self, text, vm=None, lg=None, opt=False):
        self.text = text
        self.vm = vm
        self.lg = lg
        self.opt = opt


class WaitVM:
    def __init__(self, tag):
        self.tag = tag


class WaitLG:
    def __init__(self, tag):
        self.tag = tag


class Raw:
    def __init__(self, text, flush_vm=False, flush_lg=False, fence=False):
        self.text = text
        self.flush_vm = flush_vm
        self.flush_lg = flush_lg
        self.fence = fence


def I(text):
    return Ins(text)


def VM(text, tag, opt=False):
    return Ins(text, vm=tag, opt=opt)


def DS(text, tag):
    return Ins(text, lg=tag)


def merge(main, side, start=0, every=1, count=1):
    out = []
    side = list(side)
    k = 0
    for idx, it in enumerate(main):
        out.append(it)
        if idx >= start and (idx - start) % every == every - 1:
            for _ in range(count):
                if k < len(side):
                    out.append(side[k])
                    k += 1
    out.extend(side[k:])
    return out


def merge_after(main, side, pred, count=1, skip=0):
    out = []
    side = list(side)
    k = 0
    seen = 0
    for it in main:
        out.append(it)
        if pred(it):
            seen += 1
            if seen > skip:
                for _ in range(count):
                    if k < len(side):
                        out.append(side[k])
                        k += 1
    out.extend(side[k:])
    return out


def is_mfma_item(it):
    return isinstance(it, Ins) and it.text.startswith("v_mfma")


def resolve(items):
    vm, lg, out = [], [], []
    for it in items:
        if isinstance(it, Ins):
            out.append((it.text, False, False))
            if it.vm is not None and not it.opt:
                vm.append(it.vm)
            if it.lg is not None:
                lg.append(it.lg)
        elif isinstance(it, WaitVM):
            tags = it.tag if isinstance(it.tag, (list, tuple, set)) else [it.tag]
            if it.tag == "*":
                out.append(("s_waitcnt vmcnt(0)", False, False))
                vm = []
                continue
            idx = max((i for i, t in enumerate(vm) if t in tags), default=-1)
            if idx < 0:
                continue
            n = len(vm) - idx - 1
            vm = vm[idx + 1:]
            out.append((f"s_waitcnt vmcnt({min(n, 62)})", False, False))
        elif isinstance(it, WaitLG):
            tags = it.tag if isinstance(it.tag, (list, tuple, set)) else [it.tag]
            if it.tag == "*":
                out.append(("s_waitcnt lgkmcnt(0)", False, False))
                lg = []
                continue
            idx = max((i for i, t in enumerate(lg) if t in tags), default=-1)
            if idx < 0:
                continue
            n = len(lg) - idx - 1
            lg = lg[idx + 1:]
            out.append((f"s_waitcnt lgkmcnt({min(n, 14)})", False, False))
        elif isinstance(it, Raw):
            out.append((it.text, True, it.fence))
            if it.flush_vm:
                vm = []
            if it.flush_lg:
                lg = []
        else:
            raise TypeError(it)
    return out


_REG = re.compile(r"^(-|neg\()?\|?(abs\()?([vas])(\d+|\[\d+:\d+\])\)?\|?\)?$")


def regs_of(op):
    op = op.strip()
    if op in ("vcc", "exec", "m0", "scc"):
        if op == "vcc":
            return {("s", "vcc")}
        if op == "exec":
            return {("s", "exec")}
        return {("s", op)}
    if op in ("vcc_lo", "vcc_hi"):
        return {("s", "vcc")}
    m = _REG.match(op)
    if not m:
        return set()
    kind, r = m.group(3), m.group(4)
    if r.startswith("["):
        a, b = r[1:-1].split(":")
        return {(kind, i) for i in range(int(a), int(b) + 1)}
    return {(kind, int(r))}


TRANS = ("v_exp_f32", "v_log_f32", "v_rcp_f32", "v_rsq_f32", "v_sqrt_f32", "v_sin_f32", "v_cos_f32")


def split_ops(rest):
    ops, depth, cur = [], 0, ""
    for ch in rest:
        if ch == "[":
            depth += 1
        if ch == "]":
            depth -= 1
        if ch == "," and depth == 0:
            ops.append(cur.strip())
            cur = ""
        else:
            cur += ch
    if cur.strip():
        ops.append(cur.strip())
    return ops


def analyze(text):
    t = text.split(";")[0].strip()
    parts = t.split(None, 1)
    mn = parts[0]
    rest = parts[1] if len(parts) > 1 else ""
    ops = split_ops(rest)
    if ops:
        toks = ops[-1].split()
        ops[-1] = toks[0] if toks else ""
        mods = toks[1:]
    else:
        mods = []
    d = dict(mn=mn, kind="other", w=set(), r=set(), c=set(), ab=set(), dpp=False, lds_dma=False, wide_store=set())
    R = [regs_of(o) for o in ops]
    if mn.startswith("v_mfma"):
        d["kind"] = "mfma"
        d["w"] = R[0]
        d["ab"] = R[1] | R[2]
        d["c"] = R[3]
        d["r"] = R[1] | R[2] | R[3]
    elif mn.startswith("v_cmp"):
        d["kind"] = "valu"
        d["w"] = R[0]
        d["r"] = set().union(*R[1:])
        if mn.startswith("v_cmpx"):
            d["w"] = d["w"] | {("s", "exec")}
    elif mn.startswith("v_readfirstlane") or mn.startswith("v_readlane"):
        d["kind"] = "valu"
        d["w"] = R[0]
        d["r"] = set().union(*R[1:])
        d["lane"] = True
    elif mn.startswith("v_permlane"):
        d["kind"] = "valu"
        d["w"] = R[0] | R[1]
        d["r"] = R[0] | R[1]
        d["perm"] = True
    elif mn.startswith("v_"):
        d["kind"] = "valu"
        d["w"] = R[0]
        d["r"] = set().union(*R[1:]) if len(R) > 1 else set()
        if mn.startswith(("v_add_co", "v_addc_co", "v_sub_co", "v_subb_co")):
            d["w"] = R[0] | R[1]
            d["r"] = set().union(*R[2:])
        if mn.startswith(("v_fmac", "v_pk_fmac", "v_dot2c")):
            d["r"] = d["r"] | R[0]
        if mn.startswith("v_cndmask") and len(ops) == 3:
            d["r"] = d["r"] | {("s", "vcc")}
        if any(m.startswith(("row_", "quad_perm", "wave_")) for m in mods):
            d["dpp"] = True
            d["r"] = d["r"] | R[0]
        if mn.replace("_e32", "").replace("_e64", "") in TRANS:
            d["trans"] = True
    elif mn.startswith("ds_"):
        d["kind"] = "ds"
        if mn.startswith("ds_read"):
            d["w"] = R[0]
            d["r"] = set().union(*R[1:])
        else:
            d["r"] = set().union(*R)
    elif mn.startswith(("buffer_", "global_")):
        d["kind"] = "vmem"
        lds = "lds" in mods
        d["lds_dma"] = lds
        if mn.startswith(("buffer_inv", "buffer_wbl2")):
            pass
        elif "load" in mn and not lds:
            d["w"] = R[0]
            d["r"] = set().union(*R[1:])
        elif "load" in mn:
            d["r"] = set().union(*R) | {("s", "m0")}
        else:
            d["r"] = set().union(*R)
            if "x4" in mn or "x3" in mn:
                d["wide_store"] = R[0] if mn.startswith("buffer_") else R[1]
    elif mn.startswith("s_"):
        d["kind"] = "salu"
        if mn.startswith(("s_nop", "s_waitcnt", "s_barrier", "s_sleep", "s_endpgm", "s_branch", "s_cbranch", "s_setprio")):
            d["kind"] = "ctl"
        elif mn.startswith("s_cmp"):
            d["r"] = set().union(*R)
        else:
            d["w"] = R[0] if R else set()
            d["r"] = set().union(*R[1:]) if len(R) > 1 else set()
            if "saveexec" in mn:
                d["w"] = d["w"] | {("s", "exec")}
    return d


def pad_hazards(lines):
    out = []
    pos = 0
    valu_w = {}
    trans_w = {}
    mfma_w = {}
    mfma_c = {}
    valu_sw = {}
    m0_w = -100
    store_r = {}
    valu_exec = -100
    npad = 0

    def need(p, n):
        return p + n + 1 - pos

    for text, verbatim, fence in lines:
        if verbatim:
            out.append(text)
            s = text.strip()
            is_ins = s and not s.endswith(":") and not s.startswith((".", ";"))
            if fence:
                out.append("    s_nop 7")
                out.append("    s_nop 7")
                pos += 16
            if is_ins:
                pos += 1 * len([x for x in text.split("\n") if x.strip() and not x.strip().endswith(":") and not x.strip().startswith((".", ";"))])
            continue
        d = analyze(text)
        req = 0
        k = d["kind"]
        vregs_r = {r for r in d["r"] if r[0] in "va"}
        vregs_w = {r for r in d["w"] if r[0] in "va"}
        sregs_r = {r for r in d["r"] if r[0] == "s"}
        if k == "mfma":
            for r in vregs_r:
                if r in valu_w:
                    req = max(req, need(valu_w[r], 2))
            for r in d["ab"]:
                if r in mfma_w:
                    req = max(req, need(mfma_w[r][0], 12))
            for r in d["c"]:
                if r in mfma_w and mfma_w[r][1] != d["c"]:
                    req = max(req, need(mfma_w[r][0], 10))
            for r in d["w"]:
                if r in mfma_w and mfma_w[r][1] != d["w"]:
                    req = max(req, need(mfma_w[r][0], 10))
            req = max(req, need(valu_exec, 4))
        elif k in ("valu", "ds", "vmem"):
            for r in vregs_r | vregs_w:
                if r in mfma_w:
                    req = max(req, need(mfma_w[r][0], 12))
            if k == "valu":
                for r in vregs_w:
                    if r in mfma_c:
                        req = max(req, need(mfma_c[r], 7))
                    if r in store_r:
                        req = max(req, need(store_r[r], 2))
                if not d.get("trans"):
                    for r in vregs_r:
                        if r in trans_w:
                            req = max(req, need(trans_w[r], 1))
                for r in sregs_r:
                    if r in valu_sw:
                        req = max(req, need(valu_sw[r], 4 if d.get("lane") else 2))
                if d.get("lane"):
                    for r in vregs_r:
                        if r in valu_w:
                            req = max(req, need(valu_w[r], 1))
                    req = max(req, need(valu_exec, 4))
                if d["dpp"] or d.get("perm"):
                    for r in vregs_r:
                        if r in valu_w:
                            req = max(req, need(valu_w[r], 2))
                    req = max(req, need(valu_exec, 5))
            if k == "vmem":
                for r in sregs_r:
                    if r in valu_sw:
                        req = max(req, need(valu_sw[r], 5))
                if d["lds_dma"]:
                    req = max(req, need(m0_w, 1))
            if k in ("ds", "vmem"):
                for r in vregs_w:
                    if r in store_r:
                        req = max(req, need(store_r[r], 1))
        elif k == "salu":
            for r in sregs_r:
                if r in valu_sw:
                    req = max(req, need(valu_sw[r], 4))
        while req > 0:
            n = min(req, 16)
            out.append(f"    s_nop {n - 1}")
            pos += n
            req -= n
            npad += 1
        out.append("    " + text)
        s = text.strip()
        if s.startswith("s_nop"):
            pos += int(s.split()[1]) + 1
        else:
            pos += 1
        p = pos - 1
        if k == "valu":
            for r in d["w"]:
                if r[0] in "va":
                    valu_w[r] = p
                    if d.get("trans"):
                        trans_w[r] = p
                    else:
                        trans_w.pop(r, None)
                    mfma_w.pop(r, None)
                else:
                    valu_sw[r] = p
                    if r == ("s", "exec"):
                        valu_exec = p
        elif k == "mfma":
            for r in d["w"]:
                mfma_w[r] = (p, d["w"])
                valu_w.pop(r, None)
                trans_w.pop(r, None)
            for r in d["c"]:
                mfma_c[r] = p
        elif k == "salu":
            for r in d["w"]:
                valu_sw.pop(r, None)
                if r == ("s", "m0"):
                    m0_w = p
        elif k in ("ds", "vmem"):
            for r in d["w"]:
                valu_w.pop(r, None)
                trans_w.pop(r, None)
                mfma_w.pop(r, None)
            for r in d["wide_store"]:
                store_r[r] = p
    return out, npad


def assemble_body(items):
    lines = resolve(items)
    out, npad = pad_hazards(lines)
    return "\n".join(out), npad
```

```python
import sys
import os
sys.path.insert(0, os.path.dirname(os.path.abspath(__file__)))
from asmlib import *

NAME = "gated_mix__ssm_conv_s5__dense_activation_squared_relu__prompt_kernel"

S_X, S_BRE, S_BIM, S_W1, S_W2, S_CRE, S_CIM, S_WS, S_OUT, S_DBG = 4, 8, 12, 16, 20, 24, 28, 32, 36, 40
P_LRE, P_LIM, P_LDT, P_DSK, P_B1, P_B2, P_GW = 44, 46, 48, 50, 52, 54, 56
S_C, S_S, S_W, S_R, S_N, S_NONCE = 58, 59, 60, 61, 62, 63
S_SX, S_SB, S_SW, S_LDSW, S_RING = 64, 65, 66, 67, 68
S_T0, S_T1, S_T2, S_T3 = 70, 71, 72, 73
S_M0A, S_M1A = 74, 76
S_MA, S_MB = 78, 80
S_APF, S_APF2, S_APS = 82, 83, 84
S_CNT = 85
S_A0, S_A1 = 86, 87
S_PC = 88
S_STAMP = 90
S_GROW, S_EB, S_W2B, S_CB, S_AS0, S_AS1, S_XS, S_FLB = 93, 94, 95, 96, 97, 98, 99, 100

AP_OFF = 0
G_OFF = 0xB00000
EG_OFF = 0xB04000
FL_OFF = 0xB24000
PROF_OFF = 0xB40000
WS_SIZE = 0xC00000

SLOT = 24576
SG_BASE = [122880, 73728, 0, 28672]
MISC = 151552
BT, EB, HP, GT, OT = MISC, MISC + 512, MISC + 2560, MISC + 4608, MISC + 4864
RING = 36864
NSLOT = 36
LDS_BYTES = 163840

LOG2E = 0x3FB8AA3B
INV2PI = "0.15915494"
POLL_LIMIT = 400000


def srd(x):
    return f"s[{x}:{x + 3}]"


def sp(x):
    return f"s[{x}:{x + 1}]"


def v(a, n=1):
    return f"v{a}" if n == 1 else f"v[{a}:{a + n - 1}]"


def a(x, n=1):
    return f"a{x}" if n == 1 else f"a[{x}:{x + n - 1}]"


class Gen:
    def __init__(self, local=1, prof=0, st_fl="sc1", ld_fl="sc1", pf_code=1):
        self.local = local
        self.prof = prof
        self.st_fl = st_fl
        self.ld_fl = ld_fl
        self.pf_code = pf_code
        self.nstamp = 0
        self.tail = []

    def stamp(self):
        if not self.prof:
            return []
        k = self.nstamp
        self.nstamp += 1
        return [I(f"s_memrealtime {sp(S_STAMP)}"), I("s_waitcnt lgkmcnt(0)"),
                I(f"v_writelane_b32 v255, s{S_STAMP}, {k}")]

    def prologue(self):
        p = []
        p += [Raw(f"    s_cmp_ge_u32 s2, 256\n    s_cbranch_scc1 L_end")]
        loads = [(S_X, 0), (S_BRE, 24), (S_BIM, 32), (S_W1, 80), (S_DBG, 128), (S_WS, 136), (P_LRE, 8), (P_LIM, 16),
                 (P_LDT, 56), (P_B1, 88), (P_GW, 112), (S_W2, 96), (S_CRE, 40), (S_CIM, 48), (S_OUT, 120),
                 (P_DSK, 64), (P_B2, 104)]
        for r, off in loads:
            p.append(I(f"s_load_dwordx2 {sp(r)}, s[0:1], {off}"))
        p += [I("v_and_b32 v1, 63, v0"), I("v_lshrrev_b32 v33, 6, v0"), I("s_and_b32 s70, s2, 7"),
              I("s_lshr_b32 s71, s2, 3"), I(f"v_readfirstlane_b32 s{S_W}, v33")]
        if self.local:
            p += [I("s_lshl_b32 s72, s70, 1"), I("s_and_b32 s73, s71, 1"), I(f"s_add_u32 s{S_C}, s72, s73"),
                  I(f"s_lshr_b32 s{S_S}, s71, 1")]
        else:
            p += [I("s_and_b32 s72, s70, 1"), I("s_lshl_b32 s72, s72, 3"), I("s_and_b32 s73, s71, 7"),
                  I(f"s_add_u32 s{S_C}, s72, s73"),
                  I("s_lshr_b32 s72, s70, 1"), I("s_lshl_b32 s72, s72, 2"), I("s_lshr_b32 s73, s71, 3"),
                  I(f"s_add_u32 s{S_S}, s72, s73")]
        p += [I("s_lshl_b32 s72, s70, 2"), I("s_lshr_b32 s73, s71, 3"), I(f"s_add_u32 s{S_R}, s72, s73"),
              I(f"s_and_b32 s{S_N}, s71, 7")]
        p += [I("v_lshrrev_b32 v33, 3, v1"),
              I("v_and_b32 v34, 7, v1"),
              I("v_lshrrev_b32 v35, 1, v33"),
              I("v_xor_b32 v34, v34, v35"),
              I("v_lshlrev_b32 v34, 4, v34"),
              I("v_lshrrev_b32 v35, 2, v33"),
              I("v_and_b32 v36, 3, v33"),
              I("v_lshl_add_u32 v35, v35, 4, v36"),
              I("v_lshl_add_u32 v2, v35, 10, v34"),
              I("v_xor_b32 v36, 64, v2"),
              I("v_add_u32 v3, 3072, v36"),
              I("v_add_u32 v4, 6144, v2"),
              I("v_add_u32 v5, 9216, v36"),
              I("v_lshl_add_u32 v6, v33, 10, v34"),
              I(f"s_and_b32 s72, s{S_W}, 1"),
              I("s_lshl_b32 s72, s72, 6"),
              I("v_xor_b32 v6, s72, v6")]
        p += [I(f"s_lshl_b32 s72, s{S_C}, 7"), I(f"s_lshl_b32 s73, s{S_W}, 5"), I("s_add_u32 s72, s72, s73"),
              I(f"s_lshl_b32 s{S_SX}, s72, 10"),
              I(f"s_lshl_b32 s72, s{S_S}, 5"), I(f"s_lshl_b32 s73, s{S_W}, 3"), I("s_add_u32 s72, s72, s73"),
              I(f"s_lshl_b32 s{S_SB}, s72, 10"),
              I(f"s_mul_i32 s{S_LDSW}, s{S_W}, 6144"),
              I(f"s_mul_i32 s{S_RING}, s{S_W}, {RING}"),
              I(f"s_mul_i32 s72, s{S_W}, {32 * 3584}"), I(f"s_mul_i32 s73, s{S_S}, 224"),
              I(f"s_add_u32 s{S_SW}, s72, s73")]
        p += [I("s_waitcnt lgkmcnt(0)")]
        sizes = [(S_X, 0x200000), (S_BRE, 0x80000), (S_BIM, 0x80000), (S_W1, 0x1C0000), (S_W2, 0x1C0000),
                 (S_CRE, 0x80000), (S_CIM, 0x80000), (S_WS, WS_SIZE), (S_OUT, 0x400000), (S_DBG, 256)]
        for r, sz in sizes[:4]:
            p += [I(f"s_mov_b32 s{r + 2}, {hex(sz)}"), I(f"s_mov_b32 s{r + 3}, 0x20000")]
        p += self.stage_dma(0) + self.stage_dma(1)
        for r, sz in sizes[4:]:
            p += [I(f"s_mov_b32 s{r + 2}, {hex(sz)}"), I(f"s_mov_b32 s{r + 3}, 0x20000")]
        p += self.param_loads()
        p += self.stage_dma(2) + self.stage_dma(3) + self.stage_dma(4)
        p += self.w1_offsets()
        p += self.sg_dma(0)
        p += self.read_addrs()
        return p

    def stage_dma(self, j):
        slot = (j % 5) * SLOT
        t = f"st{j}"
        p = [I(f"s_add_u32 m0, s{S_LDSW}, {slot}")]
        for i in range(4):
            off = f" offset:{1024 * i}" if i else ""
            p.append(VM(f"buffer_load_dwordx4 v{2 + i}, {srd(S_X)}, s{S_SX} offen{off} lds", t))
        p += [I(f"s_add_u32 m0, s{S_LDSW}, {slot + 4096}"), I(f"s_add_u32 s{S_SX}, s{S_SX}, 128"),
              VM(f"buffer_load_dwordx4 v6, {srd(S_BRE)}, s{S_SB} offen lds", t),
              I(f"s_add_u32 m0, s{S_LDSW}, {slot + 5120}"), I("s_nop 0"),
              VM(f"buffer_load_dwordx4 v6, {srd(S_BIM)}, s{S_SB} offen lds", t),
              I(f"s_add_u32 s{S_SB}, s{S_SB}, 128")]
        return p

    def param_loads(self):
        p = []
        p += [I("v_and_b32 v50, 31, v1"), I("v_lshrrev_b32 v51, 5, v1"), I("v_lshrrev_b32 v52, 5, v0"),
              I(f"s_lshl_b32 s72, s{S_S}, 6"), I("v_lshl_add_u32 v33, v50, 1, s72"),
              VM(f"global_load_ushort v192, v33, {sp(P_LRE)}", "par"),
              VM(f"global_load_ushort v193, v33, {sp(P_LIM)}", "par"),
              VM(f"global_load_ushort v194, v33, {sp(P_LDT)}", "par")]
        p += [I("v_and_b32 v53, 127, v0"), I(f"s_mul_i32 s72, s{S_S}, 112"), I("v_add_u32 v33, s72, v53"),
              I("v_min_u32 v33, 1791, v33"), I("v_lshlrev_b32 v33, 1, v33"),
              VM(f"global_load_ushort v195, v33, {sp(P_B1)}", "par")]
        p += [I(f"s_lshl_b32 s72, s{S_C}, 7"), I(f"s_lshl_b32 s73, s{S_S}, 3"), I("s_add_u32 s72, s72, s73"),
              I(f"s_lshl_b32 s73, s{S_W}, 1"), I(f"s_add_u32 s{S_GROW}, s72, s73"),
              I(f"s_lshl_b32 s72, s{S_GROW}, 10"), I("v_lshlrev_b32 v54, 4, v1"),
              VM(f"buffer_load_dwordx4 v[196:199], v54, {srd(S_X)}, s72 offen", "par"),
              VM(f"buffer_load_dwordx4 v[200:203], v54, {srd(S_X)}, s72 offen offset:1024", "par"),
              VM(f"global_load_dwordx4 v[204:207], v54, {sp(P_GW)}", "par")]
        p += [Raw(f"    s_or_b32 s72, s2, s{S_W}\n    s_cmp_lg_u32 s72, 0\n    s_cbranch_scc1 L_nononce\n"
                  f"    s_memrealtime {sp(S_STAMP)}\n    s_waitcnt lgkmcnt(0)\n    s_or_b32 s72, s{S_STAMP}, 1\n"
                  f"    v_mov_b32 v33, s72\n    v_mov_b32 v34, 0\n    s_mov_b64 exec, 1\n"
                  f"    buffer_store_dword v33, v34, {srd(S_DBG)}, 0 offen sc0 sc1\n    s_mov_b64 exec, -1\nL_nononce:")]
        p += [I("v_mov_b32 v55, 0"),
              VM(f"buffer_load_dword v49, v55, {srd(S_DBG)}, 0 offen sc0 sc1", "nonce")]
        if self.pf_code:
            p += [I(f"s_getpc_b64 {sp(S_PC)}"), I(f"s_lshl_b32 s72, s{S_W}, 13"),
                  I(f"s_add_u32 s{S_PC}, s{S_PC}, s72"), I(f"s_addc_u32 s{S_PC + 1}, s{S_PC + 1}, 0"),
                  I("v_lshlrev_b32 v33, 7, v1"), I(f"v_mov_b32 v35, s{S_PC + 1}"),
                  I(f"v_add_co_u32 v34, vcc, s{S_PC}, v33"), I("v_addc_co_u32 v35, vcc, 0, v35, vcc"),
                  VM("global_load_dword v56, v[34:35], off", "pf")]
        return p

    def w1_offsets(self):
        p = []
        for i in range(7):
            p += [I(f"v_add_u32 v33, {64 * i}, v1"),
                  I("v_mul_u32_u24 v34, 4682, v33"), I("v_lshrrev_b32 v34, 16, v34"),
                  I("v_mul_u32_u24 v35, 14, v34"), I("v_sub_u32 v35, v33, v35"),
                  I("v_and_b32 v36, 24, v34"),
                  I("v_bfe_u32 v37, v34, 1, 2"),
                  I("v_and_b32 v38, 1, v34"),
                  I("v_lshl_add_u32 v36, v38, 2, v36"), I("v_add_u32 v36, v36, v37"),
                  I("v_mul_u32_u24 v36, 3584, v36"),
                  I("v_lshl_add_u32 v36, v35, 4, v36")]
            if i & 3:
                p.append(I(f"v_subrev_u32 v{7 + i}, {1024 * (i & 3)}, v36"))
            else:
                p.append(I(f"v_mov_b32 v{7 + i}, v36"))
        return p

    def sg_dma(self, sg):
        t = f"sg{sg}"
        p = [I(f"s_mul_i32 s72, s{S_W}, 7168"), I(f"s_add_u32 m0, s72, {SG_BASE[sg]}")]
        for i in range(7):
            if i == 4:
                p += [I(f"s_add_u32 m0, s72, {SG_BASE[sg] + 4096}"), I("s_nop 0")]
            off = f" offset:{1024 * (i & 3)}" if i & 3 else ""
            p.append(VM(f"buffer_load_dwordx4 v{7 + i}, {srd(S_W1)}, s{S_SW} offen{off} lds", t))
        p.append(I(f"s_add_u32 s{S_SW}, s{S_SW}, {128 * 3584}"))
        return p

    def read_addrs(self):
        p = [I("v_bfe_u32 v33, v50, 1, 3"),
             I("v_xor_b32 v33, v33, v51"), I("v_lshlrev_b32 v33, 4, v33"),
             I("v_lshl_add_u32 v34, v50, 7, v33"),
             I(f"v_add_u32 v14, s{S_LDSW}, v34"),
             I("v_lshrrev_b32 v35, 3, v50"), I("v_mul_u32_u24 v35, 6144, v35"),
             I("v_and_b32 v36, 7, v50"), I("v_lshl_add_u32 v36, v36, 7, v33"),
             I("v_add_u32 v35, v35, v36"), I("v_add_u32 v22, 4096, v35")]
        for k in range(1, 4):
            p += [I(f"v_xor_b32 v{14 + k}, {k << 5}, v14"), I(f"v_xor_b32 v{22 + k}, {k << 5}, v22")]
        for k in range(4):
            p += [I(f"v_add_u32 v{18 + k}, {3 * SLOT}, v{14 + k}"), I(f"v_add_u32 v{26 + k}, {3 * SLOT}, v{22 + k}")]
        p += [I("v_mul_u32_u24 v33, 1792, v51"), I("v_bfe_u32 v34, v1, 2, 2"), I("v_mul_u32_u24 v34, 448, v34"),
              I("v_add_u32 v33, v33, v34"), I("v_bfe_u32 v34, v1, 4, 1"), I("v_lshl_add_u32 v33, v34, 5, v33"),
              I("v_and_b32 v34, 3, v1"), I("v_lshl_add_u32 v30, v34, 3, v33"),
              I(f"v_add_u32 v31, {SG_BASE[1]}, v30"), I(f"v_add_u32 v32, {SG_BASE[0]}, v30")]
        return p

    def power(self, n_reg, dr, di, t0, t1, ra=57, rb=58):
        return [I(f"v_mul_f32 v{t0}, v{n_reg}, v{ra}"), I(f"v_mul_f32 v{t1}, v{n_reg}, v{rb}"),
                I(f"v_exp_f32 v{t0}, v{t0}"), I(f"v_fract_f32 v{t1}, v{t1}"),
                I(f"v_cos_f32 v{dr}, v{t1}"), I(f"v_sin_f32 v{di}, v{t1}"), I("s_nop 0"),
                I(f"v_mul_f32 v{dr}, v{dr}, v{t0}"), I(f"v_mul_f32 v{di}, v{di}, v{t0}")]

    def constants(self):
        p = [WaitVM("par")]
        p += [I("v_lshlrev_b32 v192, 16, v192"), I("v_lshlrev_b32 v193, 16, v193"), I("v_lshlrev_b32 v194, 16, v194"),
              I("v_lshlrev_b32 v195, 16, v195"),
              I("v_lshlrev_b32 v53, 2, v53"), I(f"v_add_u32 v53, {BT}, v53"),
              DS("ds_write_b32 v53, v195", "bt"),
              I(f"s_mov_b32 s72, {hex(LOG2E)}"),
              I("v_mul_f32 v194, s72, v194"), I("v_exp_f32 v194, v194"), I("s_nop 0"),
              I("v_cvt_pk_bf16_f32 v194, v194, v194"), I("v_lshlrev_b32 v194, 16, v194"),
              I("v_mul_f32 v57, v194, v192"), I("v_mul_f32 v58, v194, v193"),
              I("v_mul_f32 v57, s72, v57"), I(f"v_mul_f32 v58, {INV2PI}, v58")]
        p += [I("v_mov_b32 v59, 1.0")] + self.power(59, 33, 34, 60, 61)
        p += [I("v_mov_b32 v59, 0x41800000")] + self.power(59, 35, 36, 60, 61)
        p += [I("v_lshlrev_b32 v59, 4, v52"), I("v_cvt_f32_u32 v59, v59")] + self.power(59, 37, 38, 60, 61)
        p += [I(f"s_sub_u32 s72, s{S_C}, 1"), I("v_sub_u32 v59, s72, v52"), I("v_max_i32 v59, 0, v59"),
              I("v_lshlrev_b32 v59, 7, v59"), I("v_cvt_f32_u32 v59, v59")] + self.power(59, 39, 40, 60, 61)
        p += [I(f"s_sub_u32 s72, s{S_C}, 9"), I("v_sub_u32 v59, s72, v52"), I("v_max_i32 v59, 0, v59"),
              I("v_lshlrev_b32 v59, 7, v59"), I("v_cvt_f32_u32 v59, v59")] + self.power(59, 41, 42, 60, 61)
        p += [I("v_add_f32 v59, -1.0, v33"),
              I("v_mul_f32 v60, v192, v192"), I("v_fmac_f32 v60, v193, v193"), I("v_rcp_f32 v60, v60"),
              I("v_mul_f32 v61, v59, v192"), I("v_fmac_f32 v61, v34, v193"),
              I("v_mul_f32 v62, v34, v192"), I("v_fma_f32 v62, -v59, v193, v62"),
              I("v_add_f32 v60, v60, v60"),
              I("v_mul_f32 v43, v61, v60"), I("v_mul_f32 v44, v62, v60")]
        p += [I(f"v_cmp_gt_u32 {sp(S_M0A)}, s{S_C}, v52"), I("v_add_u32 v59, 8, v52"),
              I(f"v_cmp_gt_u32 {sp(S_M1A)}, s{S_C}, v59")]
        return p

    def gate(self):
        p = []
        for k in range(4):
            p += [I(f"v_lshlrev_b32 v{208 + 2 * k}, 16, v{204 + k}"), I(f"v_and_b32 v{209 + 2 * k}, 0xffff0000, v{204 + k}")]
        for q in range(2):
            acc = 216 + q
            for k in range(4):
                src = 196 + 4 * q + k
                p += [I(f"v_lshlrev_b32 v218, 16, v{src}"), I(f"v_and_b32 v219, 0xffff0000, v{src}"),
                      I(f"v_mul_f32 v218, v218, v{208 + 2 * k}"), I(f"v_mul_f32 v219, v219, v{209 + 2 * k}"),
                      I("v_cvt_pk_bf16_f32 v218, v218, v219"),
                      I("v_and_b32 v219, 0xffff0000, v218"), I("v_lshlrev_b32 v218, 16, v218")]
                if k == 0:
                    p.append(I(f"v_add_f32 v{acc}, v218, v219"))
                else:
                    p += [I(f"v_add_f32 v{acc}, v{acc}, v218"), I(f"v_add_f32 v{acc}, v{acc}, v219")]
        for ctl in ("row_shr:1", "row_shr:2", "row_shr:4", "row_shr:8"):
            for q in range(2):
                p.append(I(f"v_add_f32 v{216 + q}, v{216 + q}, v{216 + q} {ctl} row_mask:0xf bank_mask:0xf bound_ctrl:0"))
        for ctl, rm in (("row_bcast:15", "0xa"), ("row_bcast:31", "0xc")):
            for q in range(2):
                p.append(I(f"v_add_f32 v{216 + q}, v{216 + q}, v{216 + q} {ctl} row_mask:{rm} bank_mask:0xf"))
        p += [I(f"s_mov_b32 s72, {hex(LOG2E ^ 0x80000000)}")]
        for q in range(2):
            z, gq, oq = 216 + q, 220 + 2 * q, 221 + 2 * q
            p += [I(f"v_cvt_pk_bf16_f32 v{z}, v{z}, v{z}"), I(f"v_lshlrev_b32 v{z}, 16, v{z}"),
                  I(f"v_mul_f32 v{z}, s72, v{z}"), I(f"v_exp_f32 v{z}, v{z}"), I("s_nop 0"),
                  I(f"v_add_f32 v{z}, 1.0, v{z}"), I(f"v_rcp_f32 v{z}, v{z}"), I("s_nop 0"),
                  I(f"v_cvt_pk_bf16_f32 v{z}, v{z}, v{z}"), I(f"v_lshlrev_b32 v{gq}, 16, v{z}"),
                  I(f"v_sub_f32 v{z}, 1.0, v{gq}"),
                  I(f"v_cvt_pk_bf16_f32 v{z}, v{z}, v{z}"), I(f"v_lshlrev_b32 v{oq}, 16, v{z}")]
        p += [I(f"s_lshl_b32 s72, s{S_GROW}, 3"), I(f"s_add_u32 s72, s72, {G_OFF}"), I("v_mov_b32 v218, 0"),
              I("s_mov_b32 exec_lo, 0"), I("s_mov_b32 exec_hi, 0x80000000"),
              VM(f"buffer_store_dwordx2 v[220:221], v218, {srd(S_WS)}, s72 offen {self.st_fl}", "gst"),
              VM(f"buffer_store_dwordx2 v[222:223], v218, {srd(S_WS)}, s72 offen offset:8 {self.st_fl}", "gst"),
              I("s_mov_b64 exec, -1")]
        return p

    def g1_stage(self, j):
        slot = j % 5
        hi = slot >= 3
        base = (slot - 3) * SLOT if hi else slot * SLOT
        xr = 18 if hi else 14
        br = 26 if hi else 22
        p = [WaitVM(f"st{j}"), I("s_barrier")]
        for k in range(4):
            ks = 4 * j + k
            p += [DS(f"ds_read_b128 {a(4 * ks, 4)}, v{xr + k} offset:{base}", f"g1_{j}_{k}"),
                  DS(f"ds_read_b128 {v(160 + 8 * k, 4)}, v{br + k} offset:{base}", f"g1_{j}_{k}"),
                  DS(f"ds_read_b128 {v(164 + 8 * k, 4)}, v{br + k} offset:{base + 1024}", f"g1_{j}_{k}")]
        if j in (1, 2, 3):
            p += self.stage_dma(j + 4)
        if j == 5:
            p += self.sg_dma(1)
        if j == 7:
            p += self.sg_dma(2)
        for k in range(4):
            ks = 4 * j + k
            p.append(WaitLG(f"g1_{j}_{k}"))
            c0 = "0" if ks == 0 else v(64, 16)
            c1 = "0" if ks == 0 else v(80, 16)
            p += [I(f"v_mfma_f32_32x32x16_bf16 {v(64, 16)}, {a(4 * ks, 4)}, {v(160 + 8 * k, 4)}, {c0}"),
                  I(f"v_mfma_f32_32x32x16_bf16 {v(80, 16)}, {a(4 * ks, 4)}, {v(164 + 8 * k, 4)}, {c1}")]
        return p

    def bias_init(self):
        p = [I(f"v_lshlrev_b32 v59, 4, v51"), I(f"v_add_u32 v59, {BT}, v59")]
        for ft in range(4):
            for g in range(4):
                p.append(DS(f"ds_read_b128 {v(96 + 16 * ft + 4 * g, 4)}, v59 offset:{128 * ft + 32 * g}", "bias"))
        return p

    def scan1(self):
        p = []
        er, ei = 64, 80
        for i in range(1, 16):
            nr, ni = (45, 46) if i % 2 == 1 else (47, 48)
            p += [I(f"v_fma_f32 v60, v33, v{er}, v{64 + i}"), I(f"v_fma_f32 v61, v33, v{ei}, v{80 + i}"),
                  I(f"v_fma_f32 v{nr}, -v34, v{ei}, v60"), I(f"v_fma_f32 v{ni}, v34, v{er}, v61")]
            er, ei = nr, ni
        assert (er, ei) == (45, 46)
        p += [I("v_lshlrev_b32 v59, 3, v0"), I(f"v_add_u32 v59, {EB}, v59"),
              I("v_mov_b32 v62, v45"), I("v_mov_b32 v63, v46"),
              DS("ds_write_b64 v59, v[62:63]", "ew"),
              WaitLG("*"), I("s_barrier")]
        return p

    def scan_prefix(self):
        p = [I("v_lshlrev_b32 v59, 3, v50"), I(f"v_add_u32 v59, {EB}, v59")]
        for s_ in range(6):
            p.append(DS(f"ds_read_b64 {v(192 + 2 * s_, 2)}, v59 offset:{256 * s_}", "er"))
        p += [I(f"s_lshl_b32 s72, s{S_W}, 9"), I("v_add_u32 v60, s72, v59"),
              DS("ds_read_b64 v[204:205], v60", "er"),
              I("v_mov_b32 v47, 0"), I("v_mov_b32 v48, 0"), WaitLG("er")]

        def step(e):
            return [f"v_fma_f32 v60, v35, v47, v{e}", f"v_fma_f32 v61, v35, v48, v{e + 1}",
                    "v_fma_f32 v62, -v36, v48, v60", "v_fma_f32 v48, v36, v47, v61", "v_mov_b32 v47, v62"]
        txt = ""
        for pair in range(3):
            txt += f"    s_cmp_le_u32 s{S_W}, {pair}\n    s_cbranch_scc1 L_pfx_half\n"
            for s_ in (2 * pair, 2 * pair + 1):
                txt += "".join("    " + x + "\n" for x in step(192 + 2 * s_))
        txt += "L_pfx_half:\n    s_mov_b32 exec_lo, 0\n"
        txt += "".join("    " + x + "\n" for x in step(204))
        txt += "    s_mov_b64 exec, -1"
        p.append(Raw(txt))
        return p

    def nonce_wait(self):
        txt = (f"    s_mov_b32 s{S_CNT}, 0\nL_nonce_chk:\n    v_cmp_ne_u32 vcc, 0, v49\n    s_nop 4\n"
               f"    s_cbranch_vccnz L_nonce_ok\n    s_add_u32 s{S_CNT}, s{S_CNT}, 1\n"
               f"    s_cmp_gt_u32 s{S_CNT}, {POLL_LIMIT}\n    s_cbranch_scc1 L_nonce_ok\n"
               f"    buffer_load_dword v49, v55, {srd(S_DBG)}, 0 offen sc0 sc1\n    s_waitcnt vmcnt(0)\n"
               f"    s_branch L_nonce_chk\nL_nonce_ok:\n    v_readfirstlane_b32 s{S_NONCE}, v49")
        return [WaitVM("nonce"), Raw(txt)]

    def publish_e(self):
        txt = (f"    s_cmp_lg_u32 s{S_W}, 3\n    s_cbranch_scc1 L_noE\n"
               f"    v_fma_f32 v60, v35, v47, v45\n    v_fma_f32 v61, v35, v48, v46\n"
               f"    v_fma_f32 v192, -v36, v48, v60\n    v_fma_f32 v194, v36, v47, v61\n"
               f"    v_mov_b32 v193, v49\n    v_mov_b32 v195, v49\n"
               f"    s_lshl_b32 s72, s{S_S}, 4\n    s_add_u32 s72, s72, s{S_C}\n    s_lshl_b32 s72, s72, 9\n"
               f"    s_add_u32 s72, s72, {EG_OFF}\n    v_lshlrev_b32 v60, 4, v50\n    s_mov_b32 exec_lo, 0\n"
               f"    buffer_store_dwordx4 v[192:195], v60, {srd(S_WS)}, s72 offen sc1\n"
               f"    s_mov_b64 exec, -1\n    s_nop 1\nL_noE:")
        return [Raw(txt)]

    def u_transform(self):
        p = []
        for i in range(16):
            rr, ri = 64 + i, 80 + i
            p += [I(f"v_mul_f32 v60, v44, v{ri}"), I(f"v_mul_f32 v61, v43, v{ri}"),
                  I(f"v_fma_f32 v{ri}, -v44, v{rr}, -v61"), I(f"v_fma_f32 v{rr}, v43, v{rr}, -v60")]
        return p

    def g2(self):
        def reads(ks):
            sg, grp, kk = ks >> 3, (ks >> 1) & 3, ks & 1
            base = {0: (32, 0), 1: (31, 0), 2: (30, SG_BASE[2]), 3: (30, SG_BASE[3])}[sg]
            out = []
            for ft in range(4):
                for e in range(2):
                    off = base[1] + 7168 * grp + kk * 3584 + e * 224 + ft * 64
                    d = 160 + 16 * (ks & 1) + 4 * ft + 2 * e
                    out.append(DS(f"ds_read_b64_tr_b16 {v(d, 2)}, v{base[0]} offset:{off}", f"g2_{ks}_{ft}"))
            return out
        p = []
        p += reads(0)
        for ks in range(32):
            if ks + 1 < 32:
                if (ks + 1) % 8 == 0:
                    p += [WaitVM(f"sg{(ks + 1) >> 3}"), I("s_barrier")]
                nxt = reads(ks + 1)
            else:
                nxt = []
            for ft in range(4):
                p.append(WaitLG(f"g2_{ks}_{ft}"))
                d = v(96 + 16 * ft, 16)
                p.append(I(f"v_mfma_f32_32x32x16_bf16 {d}, {v(160 + 16 * (ks & 1) + 4 * ft, 4)}, {a(4 * ks, 4)}, {d}"))
                p += nxt[2 * ft:2 * ft + 2]
        return p

    def e_loads(self, tag="E"):
        return [I(f"s_mov_b64 exec, {sp(S_M0A)}"),
                VM(f"buffer_load_dwordx4 v[224:227], v232, {srd(S_WS)}, s{S_EB} offen sc1", tag),
                I(f"s_mov_b64 exec, {sp(S_M1A)}"),
                VM(f"buffer_load_dwordx4 v[228:231], v233, {srd(S_WS)}, s{S_EB} offen sc1", tag),
                I("s_mov_b64 exec, -1")]

    def e_setup(self):
        p = [I("v_lshlrev_b32 v232, 4, v0"), I("v_add_u32 v233, 4096, v232"), I(f"s_lshl_b32 s72, s{S_S}, 13"),
             I(f"s_add_u32 s{S_EB}, s72, {EG_OFF}")]
        for r in range(224, 232):
            p.append(I(f"v_mov_b32 v{r}, 0"))
        return p

    def h2_epilogue(self):
        p = []
        for ft in range(4):
            for ap in range(2):
                if ft == 3 and ap == 1:
                    continue
                base = 96 + 16 * ft + 8 * ap
                dst = 192 + 4 * ((2 * ft + ap) % 4)
                for j in range(8):
                    p += [I(f"v_max_f32 v{base + j}, 0, v{base + j}"), I(f"v_mul_f32 v{base + j}, v{base + j}, v{base + j}")]
                for j in range(4):
                    p.append(I(f"v_cvt_pk_bf16_f32 v{dst + j}, v{base + 2 * j}, v{base + 2 * j + 1}"))
                fr = 2 * ft + ap
                so = S_APF if fr < 4 else S_APF2
                off = f" offset:{1024 * (fr & 3)}" if fr & 3 else ""
                p.append(VM(f"buffer_store_dwordx4 {v(dst, 4)}, v54, {srd(S_WS)}, s{so} offen{off} {self.st_fl}", "h2st"))
        return p

    def carry_and_scan2(self):
        p = []
        p += [I("v_mul_f32 v60, v39, v224"), I("v_mul_f32 v61, v39, v226"),
              I("v_fma_f32 v60, -v40, v226, v60"), I("v_fmac_f32 v61, v40, v224"),
              I("v_fmac_f32 v60, v41, v228"), I("v_fmac_f32 v61, v41, v230"),
              I("v_fma_f32 v60, -v42, v230, v60"), I("v_fmac_f32 v61, v42, v228"),
              I("v_lshlrev_b32 v59, 3, v0"), I(f"v_add_u32 v59, {HP}, v59"),
              DS("ds_write_b64 v59, v[60:61]", "hp"), WaitLG("*"), I("s_barrier"),
              I("v_lshlrev_b32 v59, 3, v50"), I(f"v_add_u32 v59, {HP}, v59")]
        for s_ in range(8):
            p.append(DS(f"ds_read_b64 {v(224 + 2 * s_, 2)}, v59 offset:{256 * s_}", "hr"))
        p.append(WaitLG("hr"))
        for s_ in range(1, 8):
            p += [I(f"v_add_f32 v224, v224, v{224 + 2 * s_}"), I(f"v_add_f32 v225, v225, v{225 + 2 * s_}")]
        p += [I("v_fma_f32 v60, v37, v224, v47"), I("v_fma_f32 v61, v37, v225, v48"),
              I("v_fma_f32 v60, -v38, v225, v60"), I("v_fmac_f32 v61, v38, v224"),
              I("v_mul_f32 v62, v43, v60"), I("v_mul_f32 v63, v43, v61"),
              I("v_fma_f32 v62, -v44, v61, v62"), I("v_fmac_f32 v63, v44, v60"),
              I("v_sub_f32 v63, 0, v63")]
        sr, si = 62, 63
        for i in range(16):
            ur, ui = 64 + i, 80 + i
            p += [I(f"v_fmac_f32 v{ur}, v33, v{sr}"), I(f"v_fmac_f32 v{ui}, v33, v{si}"),
                  I(f"v_fmac_f32 v{ur}, v34, v{si}"), I(f"v_fma_f32 v{ui}, -v34, v{sr}, v{ui}")]
            sr, si = ur, ui
        return p

    def h_store(self):
        hb = 31 * 1024
        p = []
        for k in range(8):
            p += [I(f"v_cvt_pk_bf16_f32 v{208 + k}, v{64 + 2 * k}, v{65 + 2 * k}"),
                  I(f"v_cvt_pk_bf16_f32 v{216 + k}, v{80 + 2 * k}, v{81 + 2 * k}")]
        p += [I("v_mul_u32_u24 v59, 80, v50"), I("v_lshl_add_u32 v59, v51, 5, v59"),
              I(f"s_add_u32 s72, s{S_RING}, {hb}"), I("v_add_u32 v59, s72, v59"),
              DS("ds_write_b128 v59, v[208:211]", "hw"), DS("ds_write_b128 v59, v[212:215] offset:16", "hw"),
              DS("ds_write_b128 v59, v[216:219] offset:2560", "hw"),
              DS("ds_write_b128 v59, v[220:223] offset:2576", "hw")]
        p += [I("v_bfe_u32 v60, v1, 2, 2"), I("v_lshl_add_u32 v60, v51, 3, v60"), I("v_mul_u32_u24 v60, 80, v60"),
              I("v_and_b32 v61, 1, v1"), I("v_lshlrev_b32 v61, 5, v61"),
              I("v_bfe_u32 v62, v1, 1, 1"), I("v_lshl_add_u32 v61, v62, 3, v61"),
              I("v_bfe_u32 v62, v1, 4, 1"), I("v_lshl_add_u32 v61, v62, 4, v61"),
              I("v_add_u32 v60, v60, v61"), I("v_add_u32 v60, s72, v60"), WaitLG("hw")]
        for q in range(4):
            for e in range(2):
                off = (q >> 1) * 2560 + (16 * (q & 1) + 4 * e) * 80
                p.append(DS(f"ds_read_b64_tr_b16 {v(224 + 4 * q + 2 * e, 2)}, v60 offset:{off}", f"hq{q}"))
        for q in range(4):
            off = f" offset:{1024 * q}" if q else ""
            p += [WaitLG(f"hq{q}"),
                  VM(f"buffer_store_dwordx4 {v(224 + 4 * q, 4)}, v54, {srd(S_WS)}, s{S_APS} offen{off} {self.st_fl}", "hst")]
        return p

    def p2_dma_addrs(self):
        p = [I("v_lshrrev_b32 v59, 3, v1"), I("v_and_b32 v60, 7, v1"), I("v_bfe_u32 v61, v59, 1, 1"),
             I("v_lshlrev_b32 v61, 2, v61"), I("v_xor_b32 v60, v60, v61"), I("v_lshlrev_b32 v60, 4, v60"),
             I("v_lshl_add_u32 v2, v59, 10, v60")]
        for i in range(1, 4):
            p.append(I(f"v_add_u32 v{2 + i}, {7168 * i}, v2"))
        p += [I("v_lshrrev_b32 v59, 4, v1"), I("v_and_b32 v60, 15, v1"), I("v_xor_b32 v60, v60, v59"),
              I("v_lshlrev_b32 v60, 4, v60"), I("v_lshl_add_u32 v6, v59, 10, v60")]
        for i in range(1, 4):
            p += [I(f"v_xor_b32 v61, {64 * i}, v6"), I(f"v_add_u32 v{6 + i}, {3072 * i}, v61")]
        p += [I(f"s_mul_i32 s72, s{S_W}, {448 * 1024}"), I(f"s_lshl_b32 s73, s{S_N}, 7"),
              I(f"s_add_u32 s{S_W2B}, s72, s73"),
              I(f"s_lshl_b32 s72, s{S_N}, 16"), I(f"s_lshl_b32 s73, s{S_W}, 8"),
              I(f"s_add_u32 s{S_CB}, s72, s73")]
        return p

    def b_unit(self, u):
        slot = u % NSLOT
        p = []
        i = u & 3
        if u < 56:
            grp, reg, sr_, sb = u >> 2, 2 + i, S_W2, S_W2B
            so = 32768 * grp
        else:
            uu = (u - 56) & 15
            grp, reg, sr_, sb = uu >> 2, 6 + i, (S_CRE if u < 72 else S_CIM), S_CB
            so = 16384 * grp
        p += [I(f"s_add_u32 m0, s{S_RING}, {1024 * (slot - i)}"), I(f"s_add_u32 s73, s{sb}, {so}")]
        off = f" offset:{1024 * i}" if i else ""
        tag = f"bu{u}"
        p.append(VM(f"buffer_load_dwordx4 v{reg}, {srd(sr_)}, s73 offen{off} lds", tag))
        return p

    def p2_read_addrs(self):
        p = [I("v_bfe_u32 v33, v1, 2, 2"),
             I("v_lshl_add_u32 v34, v51, 2, v33"), I("v_lshlrev_b32 v34, 7, v34"),
             I("v_bfe_u32 v35, v1, 4, 1"), I("v_lshlrev_b32 v35, 1, v35"),
             I("v_bfe_u32 v36, v1, 1, 1"), I("v_or_b32 v35, v35, v36"),
             I("v_bfe_u32 v36, v33, 1, 1"), I("v_lshlrev_b32 v36, 2, v36"), I("v_xor_b32 v35, v35, v36"),
             I("v_lshl_add_u32 v34, v35, 4, v34"),
             I("v_and_b32 v36, 1, v1"), I("v_lshl_add_u32 v34, v36, 3, v34"),
             I(f"v_add_u32 v10, s{S_RING}, v34"), I("v_xor_b32 v11, 64, v10")]
        p += [I("v_and_b32 v33, 15, v50"), I("v_xor_b32 v33, v33, v51"), I("v_lshlrev_b32 v33, 4, v33"),
              I("v_lshl_add_u32 v33, v50, 8, v33"), I(f"v_add_u32 v12, s{S_RING}, v33")]
        for st in range(1, 8):
            p.append(I(f"v_xor_b32 v{12 + st}, {st << 5}, v12"))
        return p

    def b_reads(self, i):
        out = []
        buf = 192 + 8 * (i & 1)
        if i < 28:
            for ct in range(2):
                for e in range(2):
                    slot = (2 * i + e) % NSLOT
                    out.append(DS(f"ds_read_b64_tr_b16 {v(buf + 4 * ct + 2 * e, 2)}, v{10 + ct} offset:{1024 * slot}", f"b{i}_{ct}"))
        else:
            ii = i - 28
            im, st = ii >> 3, ii & 7
            slot0 = (72 if im else 56) % NSLOT
            for ct in range(2):
                out.append(DS(f"ds_read_b128 {v(buf + 4 * ct, 4)}, v{12 + st} offset:{1024 * slot0 + 8192 * ct}", f"b{i}_{ct}"))
        return out

    def a_loads(self, i):
        out = []
        if i < 28:
            rel = i * 1024
        else:
            ii = i - 28
            im, st = ii >> 3, ii & 7
            rel = (4 * (st >> 1) + (st & 1) + 2 * im) * 1024
        for rt in range(2):
            if i < 28:
                sb = S_A0 + rt
            else:
                sb = S_AS0 + rt
            hi, lo = rel & ~4095, rel & 4095
            d = a(8 * (i % 16) + 4 * rt, 4)
            off = f" offset:{lo}" if lo else ""
            if hi:
                out.append(I(f"s_add_u32 s72, s{sb}, {hi}"))
                so = "s72"
            else:
                so = f"s{sb}"
            out.append(VM(f"buffer_load_dwordx4 {d}, v54, {srd(S_WS)}, {so} offen{off} {self.ld_fl}", f"a{i}"))
        return out

    def units_needed(self, i):
        if i < 28:
            return [f"bu{2 * i}", f"bu{2 * i + 1}"]
        if i < 36:
            return [f"bu{u}" for u in range(56, 72)]
        return [f"bu{u}" for u in range(72, 88)]

    def phase2(self):
        p = []
        p += [I(f"s_lshl_b32 s72, s{S_R}, 1"), I(f"s_mul_i32 s72, s72, {176 * 1024}"),
              I(f"s_mul_i32 s73, s{S_W}, {28 * 1024}"), I(f"s_add_u32 s{S_A0}, s72, s73"),
              I(f"s_add_u32 s{S_A1}, s{S_A0}, {176 * 1024}"),
              I(f"s_lshl_b32 s73, s{S_W}, 14"), I("s_add_u32 s72, s72, s73"),
              I(f"s_add_u32 s{S_AS0}, s72, {112 * 1024}"),
              I(f"s_add_u32 s{S_AS1}, s{S_AS0}, {176 * 1024}")]
        p += self.p2_read_addrs()
        p += [I(f"s_lshl_b32 s72, s{S_R}, 6"), I(f"s_lshl_b32 s73, s{S_W}, 4"), I("s_add_u32 s72, s72, s73"),
              I(f"s_lshl_b32 s72, s72, 10"), I(f"s_lshl_b32 s73, s{S_N}, 7"), I(f"s_add_u32 s{S_XS}, s72, s73"),
              I("v_lshlrev_b32 v20, 1, v1"), I("v_add_u32 v21, s73, v20")]
        for i in range(16):
            hi, lo = (1024 * i) & ~4095, (1024 * i) & 4095
            off = f" offset:{lo}" if lo else ""
            p += [I(f"s_add_u32 s72, s{S_XS}, {hi}"),
                  VM(f"buffer_load_ushort {a(128 + i)}, v20, {srd(S_X)}, s72 offen{off}", "xs")]
        p += [VM(f"global_load_ushort v22, v21, {sp(P_DSK)}", "xs"), VM(f"global_load_ushort v23, v21, {sp(P_B2)}", "xs")]
        p += self.stamp()
        p += [I(f"s_lshr_b32 s72, s{S_R}, 1"), I("s_lshl_b32 s72, s72, 7"), I(f"s_add_u32 s{S_FLB}, s72, {FL_OFF}"),
              I("v_and_b32 v24, 15, v1"), I("v_lshlrev_b32 v24, 2, v24")]
        txt = (f"    s_mov_b32 s{S_CNT}, 0\nL_fpoll:\n"
               f"    buffer_load_dword v25, v24, {srd(S_WS)}, s{S_FLB} offen sc1\n    s_waitcnt vmcnt(0)\n"
               f"    v_cmp_ne_u32 vcc, s{S_NONCE}, v25\n    s_add_u32 s{S_CNT}, s{S_CNT}, 1\n"
               f"    s_cmp_gt_u32 s{S_CNT}, {POLL_LIMIT}\n    s_cbranch_scc1 L_fok\n    s_nop 2\n"
               f"    s_cbranch_vccnz L_fpoll\nL_fok:")
        p.append(Raw(txt, flush_vm=True))
        p += self.stamp()
        for i in range(16):
            p += self.a_loads(i)
        p += [I(f"s_lshl_b32 s72, s{S_R}, 9"), I(f"s_add_u32 s72, s72, {G_OFF}"), I("v_lshlrev_b32 v26, 3, v1"),
              VM(f"buffer_load_dwordx2 v[28:29], v26, {srd(S_WS)}, s72 offen {self.ld_fl}", "gl")]
        p += self.b_reads(0)
        for i in range(44):
            nxt = []
            if i + 1 < 44:
                p.append(WaitVM(self.units_needed(i + 1)))
                nxt = self.b_reads(i + 1)
            accb = 64 if i < 28 else 128
            first = i in (0, 28)
            buf = 192 + 8 * (i & 1)
            p += nxt
            p.append(WaitVM(f"a{i}"))
            k = 0
            for ct in range(2):
                p.append(WaitLG(f"b{i}_{ct}"))
                for rt in range(2):
                    d = v(accb + 32 * rt + 16 * ct, 16)
                    c = "0" if first else d
                    p.append(I(f"v_mfma_f32_32x32x16_bf16 {d}, {a(8 * (i % 16) + 4 * rt, 4)}, {v(buf + 4 * ct, 4)}, {c}"))
            for u in (2 * i + NSLOT, 2 * i + NSLOT + 1):
                if u < 88:
                    p += self.b_unit(u)
            if i + 16 < 44:
                p += self.a_loads(i + 16)
            if i == 4:
                p += [WaitVM("gl"), I("v_lshlrev_b32 v26, 2, v1"), I(f"v_add_u32 v26, {GT}, v26"),
                      DS("ds_write_b32 v26, v28", "gt"), DS(f"ds_write_b32 v26, v29 offset:{OT - GT}", "gt")]
        p += self.stamp()
        p += self.final()
        return p

    def final(self):
        p = []
        p += [I("v_lshlrev_b32 v26, 6, v51"), I(f"v_add_u32 v26, {GT}, v26"),
              I("v_mul_u32_u24 v27, 272, v50"), I("v_lshl_add_u32 v27, v51, 6, v27"),
              I(f"v_add_u32 v27, s{S_RING}, v27"), WaitLG("*")]
        for rt in range(2):
            for q in range(4):
                p += [DS(f"ds_read_b128 {v(192 + 4 * q, 4)}, v26 offset:{128 * rt + 16 * q}", f"gq{rt}"),
                      DS(f"ds_read_b128 {v(208 + 4 * q, 4)}, v26 offset:{OT - GT + 128 * rt + 16 * q}", f"gq{rt}")]
            p.append(WaitLG(f"gq{rt}"))
            for ct in range(2):
                fb, sb = 64 + 32 * rt + 16 * ct, 128 + 32 * rt + 16 * ct
                for i in range(16):
                    p += [I(f"v_mul_f32 v{fb + i}, v{208 + i}, v{fb + i}"), I(f"v_fmac_f32 v{fb + i}, v{192 + i}, v{sb + i}")]
                for q in range(4):
                    p.append(DS(f"ds_write_b128 v27, {v(fb + 4 * q, 4)} offset:{272 * 32 * ct + 128 * rt + 16 * q}", "pw"))
        p += [WaitLG("*"), I("s_barrier")]
        p += [I("v_mul_u32_u24 v27, 272, v1"), I(f"s_lshl_b32 s72, s{S_W}, 6"), I("v_add_u32 v27, s72, v27"),
              I(f"v_add_u32 v30, {RING}, v27"), I(f"v_add_u32 v31, {2 * RING}, v27"), I(f"v_add_u32 v32, {3 * RING}, v27"),
              I(f"v_mov_b32 v26, s72"), I(f"v_add_u32 v26, {GT}, v26")]
        for q in range(4):
            for k, r in enumerate((27, 30, 31, 32)):
                p.append(DS(f"ds_read_b128 {v(64 + 16 * k + 4 * q, 4)}, v{r} offset:{16 * q}", f"pr{q}"))
        for q in range(4):
            p += [DS(f"ds_read_b128 {v(192 + 4 * q, 4)}, v26 offset:{16 * q}", "gf"),
                  DS(f"ds_read_b128 {v(208 + 4 * q, 4)}, v26 offset:{OT - GT + 16 * q}", "gf")]
        p += [WaitVM("xs"), I("v_lshlrev_b32 v22, 16, v22"), I("v_lshlrev_b32 v23, 16, v23"),
              I(f"s_lshl_b32 s72, s{S_R}, 6"), I(f"s_lshl_b32 s73, s{S_W}, 4"), I("s_add_u32 s72, s72, s73"),
              I("s_lshl_b32 s72, s72, 11"), I(f"s_lshl_b32 s73, s{S_N}, 8"), I(f"s_add_u32 s{S_XS}, s72, s73"),
              I("v_lshlrev_b32 v20, 2, v1"), WaitLG("gf")]
        for i in range(16):
            p += [I(f"v_add_f32 v{64 + i}, v{64 + i}, v{80 + i}"), I(f"v_add_f32 v{96 + i}, v{96 + i}, v{112 + i}"),
                  I(f"v_accvgpr_read_b32 v28, {a(128 + i)}"), I(f"v_add_f32 v{64 + i}, v{64 + i}, v{96 + i}"),
                  I("v_lshlrev_b32 v28, 16, v28"), I("v_mul_f32 v28, v28, v22"),
                  I(f"v_fmac_f32 v{64 + i}, v{192 + i}, v28"), I(f"v_fmac_f32 v{64 + i}, v{208 + i}, v23")]
            hi, lo = (2048 * i) & ~4095, (2048 * i) & 4095
            off = f" offset:{lo}" if lo else ""
            p += [I(f"s_add_u32 s72, s{S_XS}, {hi}"),
                  VM(f"buffer_store_dword v{64 + i}, v20, {srd(S_OUT)}, s72 offen{off}", "out")]
        return p

    def build(self):
        p = []
        if self.prof:
            p.append(I("v_mov_b32 v255, 0"))
        p += self.prologue()
        p += self.stamp()
        for j in range(8):
            p += self.g1_stage(j)
            if j == 0:
                p += self.stamp()
            if j == 2:
                p += self.constants()
            if j == 3:
                p += self.gate()
            if j == 6:
                p += self.bias_init()
        p += self.stamp()
        p += self.scan1()
        p += self.sg_dma(3)
        p += self.scan_prefix()
        p += self.nonce_wait()
        p += self.publish_e()
        p += self.stamp()
        p += self.u_transform()
        p += self.e_setup()
        p += self.p2_dma_addrs()
        p += [I(f"s_lshl_b32 s72, s{S_C}, 2"), I(f"s_add_u32 s72, s72, s{S_W}"), I(f"s_mul_i32 s72, s72, {176 * 1024}"),
              I(f"s_mul_i32 s73, s{S_S}, {7 * 1024}"), I(f"s_add_u32 s{S_APF}, s72, s73"),
              I(f"s_add_u32 s{S_APF2}, s{S_APF}, 4096"),
              I(f"s_lshl_b32 s73, s{S_S}, 12"), I("s_add_u32 s72, s72, s73"), I(f"s_add_u32 s{S_APS}, s72, {112 * 1024}")]
        p += [WaitLG("bias")]
        p += self.g2()
        p += self.stamp()
        p += self.e_loads()
        p += [WaitLG("*"), I("s_barrier")]
        pre = []
        for u in range(31):
            pre.append(self.b_unit(u))
        h2 = self.h2_epilogue()
        body, k = [], 0
        for idx, it in enumerate(h2):
            body.append(it)
            if idx % 6 == 5 and k < len(pre):
                body += pre[k]
                k += 1
        p += body
        p += [WaitVM("E"), Raw(self.e_check_text())]
        p += self.stamp()
        rest = pre[k:]
        cs = self.carry_and_scan2() + self.h_store()
        body, k = [], 0
        for idx, it in enumerate(cs):
            body.append(it)
            if idx % 8 == 7 and k < len(rest) and not isinstance(it, (WaitLG, WaitVM)):
                body += rest[k]
                k += 1
        p += body
        for x in rest[k:]:
            p += x
        p += [WaitLG("*")]
        for u in range(31, 36):
            p += self.b_unit(u)
        p += self.stamp()
        p += [WaitVM(["hst", "h2st", "gst"]), I("s_barrier")]
        txt = (f"    s_cmp_lg_u32 s{S_W}, 0\n    s_cbranch_scc1 L_noflag\n"
               f"    s_lshl_b32 s72, s{S_C}, 5\n    s_add_u32 s72, s72, s{S_S}\n    s_lshl_b32 s72, s72, 2\n"
               f"    s_add_u32 s72, s72, {FL_OFF}\n    v_mov_b32 v33, 0\n    v_mov_b32 v34, s{S_NONCE}\n"
               f"    s_mov_b64 exec, 1\n    buffer_store_dword v34, v33, {srd(S_WS)}, s72 offen sc1\n"
               f"    s_mov_b64 exec, -1\nL_noflag:")
        p.append(Raw(txt))
        p += self.stamp()
        p += self.phase2()
        p += self.stamp()
        if self.prof:
            p += [I(f"s_lshl_b32 s72, s2, 2"), I(f"s_add_u32 s72, s72, s{S_W}"), I("s_lshl_b32 s72, s72, 8"),
                  I(f"s_add_u32 s72, s72, {PROF_OFF}"), I("v_lshlrev_b32 v20, 2, v1"),
                  VM(f"buffer_store_dword v255, v20, {srd(S_WS)}, s72 offen", "prof")]
        p += [Raw("L_end:\n    s_endpgm")]
        return p

    def e_check_text(self):
        def loads():
            return (f"    s_mov_b64 exec, {sp(S_M0A)}\n"
                    f"    buffer_load_dwordx4 v[224:227], v232, {srd(S_WS)}, s{S_EB} offen sc1\n"
                    f"    s_mov_b64 exec, {sp(S_M1A)}\n"
                    f"    buffer_load_dwordx4 v[228:231], v233, {srd(S_WS)}, s{S_EB} offen sc1\n"
                    f"    s_mov_b64 exec, -1\n")
        chk = (f"    s_mov_b64 exec, {sp(S_M0A)}\n"
               f"    v_cmp_ne_u32 {sp(S_MA)}, v49, v225\n    v_cmp_ne_u32 {sp(S_MB)}, v49, v227\n"
               f"    s_nop 3\n    s_or_b64 {sp(S_MA)}, {sp(S_MA)}, {sp(S_MB)}\n"
               f"    s_mov_b64 exec, {sp(S_M1A)}\n"
               f"    v_cmp_ne_u32 vcc, v49, v229\n    v_cmp_ne_u32 {sp(S_MB)}, v49, v231\n"
               f"    s_nop 3\n    s_or_b64 {sp(S_MA)}, {sp(S_MA)}, vcc\n"
               f"    s_mov_b64 exec, -1\n"
               f"    s_or_b64 {sp(S_MA)}, {sp(S_MA)}, {sp(S_MB)}\n")
        return (f"    s_mov_b32 s{S_CNT}, 0\nL_echk:\n" + chk +
                f"    s_cbranch_scc0 L_eok\n    s_add_u32 s{S_CNT}, s{S_CNT}, 1\n"
                f"    s_cmp_gt_u32 s{S_CNT}, {POLL_LIMIT}\n    s_cbranch_scc1 L_eok\n" + loads() +
                f"    s_waitcnt vmcnt(0)\n    s_branch L_echk\nL_eok:")

    def text(self):
        body, npad = assemble_body(self.build())
        hdr = open(os.path.join(os.path.dirname(os.path.abspath(__file__)), "header.txt")).read()
        return (hdr + f"; @launch grid=(256,1,1) block=(256,1,1) lds={LDS_BYTES}\n"
                f".amdgcn_target \"amdgcn-amd-amdhsa--gfx950\"\n.text\n.globl {NAME}\n.p2align 8\n"
                f".type {NAME},@function\n{NAME}:\n{body}\n"
                f"    .fill 8192, 4, 0xbf800000\n"
                f".section .rodata,\"a\"\n.p2align 6\n.amdhsa_kernel {NAME}\n"
                f"  .amdhsa_next_free_vgpr 512\n  .amdhsa_next_free_sgpr 102\n  .amdhsa_accum_offset 256\n"
                f"  .amdhsa_group_segment_fixed_size 0\n  .amdhsa_kernarg_size 144\n  .amdhsa_user_sgpr_count 2\n"
                f"  .amdhsa_user_sgpr_kernarg_segment_ptr 1\n  .amdhsa_system_sgpr_workgroup_id_x 1\n"
                f"  .amdhsa_float_denorm_mode_32 3\n"
                f".end_amdhsa_kernel\n"), npad


if __name__ == "__main__":
    import argparse
    ap = argparse.ArgumentParser()
    ap.add_argument("-o", default="k.s")
    ap.add_argument("--local", type=int, default=1)
    ap.add_argument("--prof", type=int, default=0)
    ap.add_argument("--pf", type=int, default=1)
    args = ap.parse_args()
    g = Gen(local=args.local, prof=args.prof, pf_code=args.pf)
    t, npad = g.text()
    open(args.o, "w").write(t)
    print("written", args.o, "bytes", len(t), "nop pads", npad, "stamps", g.nstamp)
```
